```python
import torch

def _softmax(x, axis=-1):
    return torch.softmax(x, dim=axis)
def _gelu(x):
    return torch.nn.functional.gelu(x, approximate="tanh")
def _silu(x):
    return torch.nn.functional.silu(x)
def _sigmoid(x):
    return torch.sigmoid(x)
def _layernorm(x, axis=-1, eps=1e-5):
    m = x.mean(dim=axis, keepdim=True)
    v = x.var(dim=axis, keepdim=True, unbiased=False)
    return (x - m) / torch.sqrt(v + eps)
def _scatter_add(tgt, idx, src, axis=0):
    return tgt.clone().index_add_(axis, idx, src)
def _segment_sum(src, seg, n):
    out = torch.zeros((n,) + src.shape[1:], dtype=src.dtype)
    return out.index_add_(0, seg, src)
def _pad(x, pw):
    flat = tuple(v for pair in reversed(pw) for v in pair)
    return torch.nn.functional.pad(x, flat)

kernel_name = 'concat_heads__gqa_block_cached__mha_block_cached__near_ridge'

def setup_inputs():

    _w = (lambda a: (lambda t: t.to(torch.bfloat16) if t.is_floating_point() else t)(torch.as_tensor(a)))
    def _A_setup():
        B, Sq, D = 8, 80, 512
        Hq, Hkv, Sk, Dh = 32, 8, 2048, 128
        assert Hq % Hkv == 0, (Hq, Hkv)
        return {
            "x": _w((lambda *s: torch.randn(*s, dtype=torch.bfloat16) * 0.8)(B, Sq, D)),
            "k_cache": _w((lambda *s: torch.randn(*s, dtype=torch.bfloat16) * 0.8)(B, Hkv, Sk, Dh)),
            "v_cache": _w((lambda *s: torch.randn(*s, dtype=torch.bfloat16) * 0.05)(B, Hkv, Sk, Dh)),
            "wq": _w((lambda *s: torch.randn(*s, dtype=torch.bfloat16) * 0.8)(D, Hq * Dh) * (D ** -0.5)),
            "wo": _w((lambda *s: torch.randn(*s, dtype=torch.bfloat16) * 0.05)(Hq * Dh, D) * ((Hq * Dh) ** -0.5)),
        }
    _A_in = _A_setup()

    def _B_setup():
        B, Sq, D = 8, 80, 512
        H, Sk, Dh = 32, 2048, 128
        return {
            "x": _w((lambda *s: torch.randn(*s, dtype=torch.bfloat16) * 0.8)(B, Sq, D)),
            "k_cache": _w((lambda *s: torch.randn(*s, dtype=torch.bfloat16) * 0.8)(B, H, Sk, Dh)),
            "v_cache": _w((lambda *s: torch.randn(*s, dtype=torch.bfloat16) * 0.05)(B, H, Sk, Dh)),
            "wq": _w((lambda *s: torch.randn(*s, dtype=torch.bfloat16) * 0.8)(D, H * Dh) * (D ** -0.5)),
            "wo": _w((lambda *s: torch.randn(*s, dtype=torch.bfloat16) * 0.05)(H * Dh, D) * ((H * Dh) ** -0.5)),
        }
    _B_in = _B_setup()

    return {
        "A_x": _A_in["x"],
        "A_k_cache": _A_in["k_cache"],
        "A_v_cache": _A_in["v_cache"],
        "A_wq": _A_in["wq"],
        "A_wo": _A_in["wo"],
        "B_x": _B_in["x"],
        "B_k_cache": _B_in["k_cache"],
        "B_v_cache": _B_in["v_cache"],
        "B_wq": _B_in["wq"],
        "B_wo": _B_in["wo"],
    }

def reference(A_x, A_k_cache, A_v_cache, A_wq, A_wo, B_x, B_k_cache, B_v_cache, B_wq, B_wo):
    def _A_ref(x, k_cache, v_cache, wq, wo):
        B, Sq, D = x.shape
        Hq, Dh = 32, 128
        Hkv = k_cache.shape[1]
        rep = Hq // Hkv
        q = (lambda x, *d: x.permute(*d))((x @ wq).reshape(B, Sq, Hq, Dh), 0, 2, 1, 3)
        k = (lambda x, n, axis: torch.repeat_interleave(x, n, dim=axis))(k_cache, rep, axis=1)
        v = (lambda x, n, axis: torch.repeat_interleave(x, n, dim=axis))(v_cache, rep, axis=1)
        scores = torch.einsum("bhqd,bhkd->bhqk", q, k) * (Dh ** -0.5)
        p = _softmax(scores, axis=-1)
        o = torch.einsum("bhqk,bhkd->bhqd", p, v)
        return (lambda x, *d: x.permute(*d))(o, 0, 2, 1, 3).reshape(B, Sq, Hq * Dh) @ wo

    def _B_ref(x, k_cache, v_cache, wq, wo):
        B, Sq, D = x.shape
        H, Dh = 32, 128
        q = (lambda x, *d: x.permute(*d))((x @ wq).reshape(B, Sq, H, Dh), 0, 2, 1, 3)
        scores = torch.einsum("bhqd,bhkd->bhqk", q, k_cache) * (Dh ** -0.5)
        p = _softmax(scores, axis=-1)
        o = torch.einsum("bhqk,bhkd->bhqd", p, v_cache)
        return (lambda x, *d: x.permute(*d))(o, 0, 2, 1, 3).reshape(B, Sq, H * Dh) @ wo

    a = _A_ref(A_x, A_k_cache, A_v_cache, A_wq, A_wo)
    b = _B_ref(B_x, B_k_cache, B_v_cache, B_wq, B_wo)
    return torch.concatenate([a, b], axis=-1)
```

```python
import re

class Prog:
    def __init__(self):
        self.lines = []
        self.trace = []
        self.tracing = True
        self.emit_text = True
    def e(self, s):
        for ln in s.split("\n"):
            ln = ln.rstrip()
            if not ln.strip(): continue
            if self.emit_text: self.lines.append(ln)
            st = ln.strip()
            if self.tracing and not st.startswith(";") and not st.startswith(".") and not re.match(r"^[\w.$]+:", st):
                self.trace.append(st)
    def label(self, l):
        if self.emit_text: self.lines.append(l + ":")
    def loop(self, body, tail, label, trace_iters=2):
        self.label(label)
        body(); tail()
        save = self.emit_text
        self.emit_text = False
        for _ in range(trace_iters - 1):
            body(); tail()
        self.emit_text = save
    def notrace(self, fn):
        save = self.tracing; self.tracing = False; fn(); self.tracing = save
    def text(self): return "\n".join(self.lines) + "\n"

_reg = re.compile(r"^(-|\|)?([vas])(?:(\d+)|\[(\d+):(\d+)\])\|?$")
def regs(tok):
    tok = tok.strip()
    tok = re.sub(r"^(neg|abs)\((.*)\)$", r"\2", tok)
    if tok in ("vcc",): return [("s", 106), ("s", 107)]
    if tok == "vcc_lo": return [("s", 106)]
    if tok == "vcc_hi": return [("s", 107)]
    if tok == "exec": return [("s", 126), ("s", 127)]
    if tok == "m0": return [("s", 124)]
    m = _reg.match(tok)
    if not m: return []
    f = m.group(2)
    if m.group(3) is not None: return [(f, int(m.group(3)))]
    return [(f, i) for i in range(int(m.group(4)), int(m.group(5)) + 1)]

TRANS = ("v_exp_f32", "v_log_f32", "v_rcp_f32", "v_rsq_f32", "v_sqrt_f32", "v_sin_f32", "v_cos_f32", "v_rcp_iflag_f32")
class Ins:
    def __init__(self, s):
        self.s = s
        tag = ""
        if ";" in s:
            s, tag = s.split(";", 1)
        self.tag = tag.strip()
        s = s.strip()
        parts = s.split(None, 1)
        self.op = parts[0]
        rest = parts[1] if len(parts) > 1 else ""
        ops = [o.strip() for o in rest.split(",")] if rest else []
        mods = []
        if ops:
            last = ops[-1].split()
            if last:
                ops[-1] = last[0]; mods = last[1:]
        self.ops = ops; self.mods = mods
        op = self.op
        self.wr = []; self.rd = []
        self.kind = "other"
        R = lambda i: regs(ops[i]) if i < len(ops) else []
        if op.startswith("v_mfma"):
            self.kind = "mfma"; self.wr = R(0); self.A = R(1); self.B = R(2); self.C = R(3)
            self.rd = self.A + self.B + self.C
            self.passes = 4 if "16x16x32" in op or "16x16x16" in op else 8
        elif op.startswith("v_cmp"):
            self.kind = "valu"; self.wr = R(0); self.rd = R(1) + R(2)
            if op.startswith("v_cmpx"): self.wr = self.wr + regs("exec")
        elif op.startswith("v_readfirstlane") or op.startswith("v_readlane"):
            self.kind = "valu"; self.wr = R(0); self.rd = R(1) + R(2)
        elif op.startswith("v_permlane") and "swap" in op:
            self.kind = "valu"; self.wr = R(0) + R(1); self.rd = R(0) + R(1)
        elif op.startswith("v_"):
            self.kind = "valu"; self.wr = R(0)
            i0 = 1
            if "_co_" in op: self.wr = self.wr + R(1); i0 = 2
            self.rd = sum((R(i) for i in range(i0, len(ops))), [])
            if op.startswith(("v_fmac", "v_mac", "v_dot2c", "v_writelane")): self.rd += R(0)
            if op.startswith("v_cndmask") and len(ops) == 3: self.rd += regs("vcc")
        elif op.startswith("ds_read") or op.startswith("ds_bpermute") or op.startswith("ds_swizzle") or op.startswith("ds_permute"):
            self.kind = "dsr"; self.wr = R(0); self.rd = sum((R(i) for i in range(1, len(ops))), [])
        elif op.startswith("ds_"):
            self.kind = "dsw"; self.rd = sum((R(i) for i in range(len(ops))), [])
        elif op.startswith("buffer_load") or op.startswith("global_load"):
            if "lds" in mods or "_lds_" in op:
                self.kind = "dma"; self.rd = sum((R(i) for i in range(len(ops))), []) + regs("m0")
            else:
                self.kind = "vld"; self.wr = R(0); self.rd = sum((R(i) for i in range(1, len(ops))), [])
        elif op.startswith("buffer_store") or op.startswith("global_store"):
            self.kind = "vst"; self.rd = sum((R(i) for i in range(len(ops))), [])
            self.data = R(0) if op.startswith("buffer") else R(1)
        elif op.startswith("buffer_atomic") or op.startswith("global_atomic"):
            self.kind = "vat"; self.rd = sum((R(i) for i in range(len(ops))), [])
            if "sc0" in mods: self.wr = R(0)[:1]
        elif op.startswith("buffer_wbl2") or op.startswith("buffer_inv"):
            self.kind = "vst"; self.data = []
        elif op.startswith("s_load") or op.startswith("s_memrealtime") or op.startswith("s_memtime"):
            self.kind = "smem"; self.wr = R(0); self.rd = sum((R(i) for i in range(1, len(ops))), [])
        elif op == "s_waitcnt":
            self.kind = "wait"
            txt = rest
            m = re.search(r"vmcnt\((\d+)\)", txt); self.vm = int(m.group(1)) if m else None
            m = re.search(r"lgkmcnt\((\d+)\)", txt); self.lg = int(m.group(1)) if m else None
        elif op == "s_nop":
            self.kind = "nop"; self.n = int(ops[0], 0) + 1
        elif op.startswith("s_cmp") or op.startswith("s_bitcmp"):
            self.kind = "salu"; self.rd = R(0) + R(1)
        elif op.startswith("s_cbranch") or op in ("s_branch", "s_barrier", "s_endpgm", "s_sleep", "s_setprio"):
            self.kind = "ctl"
        elif op.startswith("s_"):
            self.kind = "salu"; self.wr = R(0); self.rd = sum((R(i) for i in range(1, len(ops))), [])
            if op.endswith("saveexec_b64"): self.wr = self.wr + regs("exec"); self.rd += regs("exec")
            if op in ("s_addk_i32", "s_mulk_i32"): self.rd += R(0)

def check(trace, name=""):
    ins = [Ins(s) for s in trace]
    errs = []
    for i in ins:
        for m in i.mods:
            if m.startswith("offset:"):
                v = int(m[7:], 0)
                if i.op.startswith("buffer") and not 0 <= v <= 4095: errs.append(f"[{name}] buffer offset out of range: {i.s}")
                if i.op.startswith("ds_") and not 0 <= v <= 65535: errs.append(f"[{name}] ds offset out of range: {i.s}")
                if i.op.startswith("global") and not -4096 <= v <= 4095: errs.append(f"[{name}] global offset out of range: {i.s}")
    n = len(ins)
    states = [i.n if i.kind == "nop" else 1 for i in ins]
    def dist(a, b):
        return sum(states[a + 1:b])
    W = 24
    for b in range(n):
        B = ins[b]
        for a in range(max(0, b - W), b):
            A = ins[a]
            d = dist(a, b)
            need = 0; why = ""
            aw = set(A.wr); br = set(B.rd); bw = set(B.wr)
            vec = lambda S: {r for r in S if r[0] in "va"}
            sg = lambda S: {r for r in S if r[0] == "s"}
            if A.kind == "valu" and B.kind == "mfma" and vec(aw) & br:
                need, why = 2, "VALU->MFMA read"
            if A.kind == "mfma":
                p = A.passes; tbl = {4: dict(val=8, cpart=6, ab=8, war=3), 8: dict(val=12, cpart=10, ab=12, war=7)}[p]
                if B.kind == "mfma":
                    if aw & (set(B.A) | set(B.B)): need, why = tbl["ab"], "MFMA D->MFMA A/B"
                    elif aw & set(B.C):
                        if not (A.wr == B.C and A.passes == B.passes): need, why = tbl["cpart"], "MFMA D->MFMA C partial"
                elif B.kind == "valu":
                    if aw & (br | bw): need, why = tbl["val"], "MFMA D->VALU"
                    elif set(A.C) & bw: need, why = tbl["war"], "MFMA C WAR VALU"
                elif B.kind in ("dsr", "dsw", "vld", "vst", "vat", "dma"):
                    if aw & (br | bw): need, why = tbl["val"], "MFMA D->mem"
            if A.kind == "valu" and A.op in TRANS and B.kind == "valu" and B.op not in TRANS and vec(aw) & br:
                need, why = max(need, 1), "trans->valu"
            if A.kind == "valu" and sg(aw):
                if B.kind in ("vld", "vst", "vat", "dma") and sg(aw) & br: need, why = max(need, 5), "VALU sgpr->VMEM"
                if B.kind in ("valu", "mfma") and sg(aw) & br:
                    k = 4 if B.op.startswith(("v_readlane", "v_writelane")) else 2
                    need, why = max(need, k), "VALU sgpr->VALU"
            if A.kind == "valu" and B.kind == "valu" and B.op.startswith(("v_readlane", "v_readfirstlane")) and vec(aw) & br:
                need, why = max(need, 1), "VALU->readlane"
            if A.kind == "valu" and B.kind == "valu" and (B.op.startswith("v_permlane") or any(m.startswith(("row_", "quad_perm", "wave_")) for m in B.mods)) and vec(aw) & br:
                need, why = max(need, 2), "VALU->permlane/dpp"
            if A.kind == "salu" and ("s", 124) in aw and B.kind == "dma":
                need, why = max(need, 1), "m0->dma"
            if A.kind == "vst" and ("x4" in A.op or "x3" in A.op) and set(A.data) & bw:
                need, why = max(need, 2 if B.kind == "valu" else 1), "store data WAR"
            if A.kind == "valu" and ("s", 126) in aw and B.kind == "mfma": need, why = max(need, 4), "exec->mfma"
            if need and d < need:
                errs.append(f"[{name}] hazard {why}: need {need} have {d}\n    #{a}: {A.s}\n    #{b}: {B.s}")
    vmq = []
    lgq = []
    smem_pending = []
    def region(i, key):
        m = re.search(key + r"=(\S+)", i.tag); return m.group(1).split("+") if m else []
    for b, B in enumerate(ins):
        if B.kind == "wait":
            if B.vm is not None:
                while len(vmq) > B.vm: vmq.pop(0)
            if B.lg is not None:
                if B.lg == 0: lgq.clear(); smem_pending.clear()
                else:
                    if smem_pending: errs.append(f"[{name}] counted lgkmcnt with SMEM outstanding at #{b}: {B.s}")
                    while len(lgq) > B.lg: lgq.pop(0)
            continue
        touched = set(B.rd) | set(B.wr)
        for (a, rs, reg) in vmq:
            if rs & touched: errs.append(f"[{name}] vmcnt: pending load regs used\n    #{a}: {ins[a].s}\n    #{b}: {B.s}")
        for (a, rs, reg) in lgq + smem_pending:
            if rs & touched: errs.append(f"[{name}] lgkmcnt: pending regs used\n    #{a}: {ins[a].s}\n    #{b}: {B.s}")
        rdreg = region(B, "rd"); wrreg = region(B, "wr")
        if B.kind in ("dsr",) and rdreg:
            for (a, rs, reg) in vmq:
                if set(reg) & set(rdreg): errs.append(f"[{name}] ds_read of region with DMA pending\n    #{a}: {ins[a].s}\n    #{b}: {B.s}")
        if B.kind in ("dma", "dsw") and wrreg:
            for (a, rs, reg) in lgq:
                if ins[a].kind == "dsr" and set(reg) & set(wrreg): errs.append(f"[{name}] write into region with reads pending\n    #{a}: {ins[a].s}\n    #{b}: {B.s}")
        if B.kind in ("vld", "vat"): vmq.append((b, set(B.wr), []))
        elif B.kind == "dma": vmq.append((b, set(), wrreg))
        elif B.kind == "vst": vmq.append((b, set(), []))
        elif B.kind == "dsr": lgq.append((b, set(B.wr), rdreg))
        elif B.kind == "dsw": lgq.append((b, set(), wrreg))
        elif B.kind == "smem": smem_pending.append((b, set(B.wr), []))
        if len(vmq) > 63: errs.append(f"[{name}] vmcnt overflow at #{b}: {B.s}")
        if B.op == "s_barrier" and any(ins[a].kind == "dsw" for (a, _, _) in lgq):
            errs.append(f"[{name}] barrier with LDS writes pending at #{b}")
    return errs
```

```python
import sys
sys.path.insert(0, "dev")
from asmfw import Prog, check
NAME = "concat_heads__gqa_block_cached__mha_block_cached__near_ridge"
MF = "v_mfma_f32_16x16x32_bf16"
def vr(b, n=4): return f"v[{b}:{b+n-1}]"
def ar(b, n=4): return f"a[{b}:{b+n-1}]"
def sr(b): return f"s[{b}:{b+3}]"

vKA = [10, 11, 12, 13]
vVA = list(range(14, 22))
vDK = [22, 23, 24, 25]
vDV = [26, 27]
vDW = [28, 29]
vWA = [30, 31, 32, 33]
vXO = 34
vLin = 35
vDO = [36, 37]
vPA, vPV = 38, 39
aOnes = 248
def S(n, kt): return 40 + (n * 2 + kt) * 4
def P(n): return 80 + 4 * n
def K(kt, ks): return 100 + (kt * 4 + ks) * 4
def V(mt): return 132 + 4 * mt
def L(n): return 164 + 4 * n
def X(n, s):
    i = n * 4 + s
    return vr(184 + 4 * i) if i < 18 else ar(240 + 4 * (i - 18))
def O(mt, n): return (mt * 5 + n) * 4
def Q(n, ks): return 160 + (n * 4 + ks) * 4
def R(i, n): return 40 + (i * 5 + n) * 4

sR = [41, 42, 43, 3]
SRD_F = 4
sW, sB, sH, sXCD, sJ, sPH, sP = 34, 35, 36, 37, 38, 39, 40
SRD_X, SRD_WQ, SRD_K, SRD_V, SRD_O = 44, 48, 52, 56, 60
sREG = 64
sT0, sT1, sT2, sT3 = 65, 66, 67, 68
sKT, sVT = 69, 70
sCNT = 71
sW13 = 72
sEXP = 73
sRET = 96
sT4, sT5 = 98, 99
sWG = 100
REGION = 40960
OUTBOX = 24576
XTRA = 32768
PWS = 16 << 20
FLG = 32 << 20
SPIN = 1 << 22

class Cfg:
    nt = True
    stagger = True
    stamps = False
    rot = True
    sc1 = True

def interleave(p, mf, fill):
    n = len(mf); m = len(fill); k = 0
    for i, x in enumerate(mf):
        p.e(x)
        tgt = min(m, ((i + 1) * m + n - 1) // n if i < n - 1 else m)
        while k < tgt:
            p.e(fill[k]); k += 1

def rs_sub(p, label):
    e = p.e
    p.label(label)
    e(f"  s_add_u32 s{sT0}, s{sREG}, {OUTBOX}\n  v_add_u32 v6, s{sT0}, v{vLin}")
    for dd in (1, 2, 3):
        e(f"  s_sub_u32 s{sT0}, s{sW}, {dd}\n  s_and_b32 s{sT0}, s{sT0}, 3\n  s_mul_i32 s{sT0}, s{sT0}, {REGION}\n  s_add_u32 s{sT0}, s{sT0}, {OUTBOX + (dd-1)*5120}")
        e(f"  v_add_u32 v{6+dd}, s{sT0}, v{vLin}")
    for i in range(2):
        for dd in (1, 2, 3):
            for n in range(5):
                e(f"  ds_write_b128 v6, {ar(O(2*dd+i, n))} offset:{((dd-1)*5+n)*1024}")
        if i == 0:
            e(f"  v_and_b32 v1, 15, v0\n  v_lshlrev_b32 v1, 2, v1\n  s_add_u32 s{sT0}, s{sREG}, {OUTBOX + 15*1024}\n  v_add_u32 v1, s{sT0}, v1")
            for n in range(5): e(f"  ds_write_b32 v1, v{L(n)} offset:{n*64}")
            for ii in range(2):
                for n in range(5):
                    for r in range(4): e(f"  v_accvgpr_read_b32 v{R(ii,n)+r}, a{O(ii,n)+r}")
        e("  s_waitcnt lgkmcnt(0)\n  s_barrier")
        for dd in (1, 2, 3):
            for n in range(5):
                e(f"  ds_read_b128 {vr(100 + ((dd-1)*5+n)*4)}, v{6+dd} offset:{n*1024}")
        if i == 0:
            e(f"  v_and_b32 v1, 15, v0\n  v_lshlrev_b32 v1, 2, v1\n  v_add_u32 v1, {OUTBOX + 15*1024}, v1")
            for w in range(4):
                if w: e(f"  v_add_u32 v1, {REGION}, v1")
                for n in range(5): e(f"  ds_read_b32 v{80 + w*5 + n}, v1 offset:{n*64}")
        e("  s_waitcnt lgkmcnt(0)")
        for dd in (1, 2, 3):
            for n in range(5):
                for r in range(4): e(f"  v_add_f32 v{R(i,n)+r}, v{R(i,n)+r}, v{100 + ((dd-1)*5+n)*4 + r}")
        if i == 0:
            for n in range(5):
                e(f"  v_add_f32 v{80+n}, v{80+n}, v{85+n}\n  v_add_f32 v{90+n}, v{90+n}, v{95+n}")
            for n in range(5): e(f"  v_add_f32 v{1+n}, v{80+n}, v{90+n}")
            e("  s_barrier")
    e(f"  s_setpc_b64 s[{sRET}:{sRET+1}]")

def gen(p, cfg, kname):
    e = p.e
    nt = " nt" if cfg.nt else ""
    sc1 = " sc1" if cfg.sc1 else ""
    uid = [0]
    def lab(s): uid[0] += 1; return f"{s}_{uid[0]}"
    e(f".globl {kname}\n.p2align 8\n.type {kname},@function")
    p.label(kname)
    e("  s_cmp_ge_u32 s2, 256\n  s_cbranch_scc1 L1_end")
    if cfg.stamps: e("  s_memrealtime s[74:75]")
    e("  s_load_dwordx16 s[8:23], s[0:1], 0\n  s_load_dwordx8 s[24:31], s[0:1], 64\n  s_load_dwordx2 s[32:33], s[0:1], 96")
    e(f"  s_mov_b32 s{sWG}, s2")
    e("  v_lshrrev_b32 v1, 6, v0\n  v_and_b32 v0, 63, v0\n  s_nop 0")
    e(f"  v_readfirstlane_b32 s{sW}, v1")
    e(f"  s_and_b32 s{sXCD}, s2, 7\n  s_lshr_b32 s{sT0}, s2, 3\n  s_lshr_b32 s{sB}, s{sT0}, 2\n  s_and_b32 s{sJ}, s{sT0}, 3")
    e(f"  s_lshl_b32 s{sH}, s{sXCD}, 2\n  s_add_u32 s{sH}, s{sH}, s{sJ}")
    e(f"  s_mul_i32 s{sREG}, s{sW}, {REGION}\n  s_lshl_b32 s{sW13}, s{sW}, 13")
    if cfg.rot: e(f"  s_add_u32 s{sT0}, s{sB}, s{sJ}")
    else: e(f"  s_mov_b32 s{sT0}, 0")
    for s in range(4): e(f"  s_add_u32 s{sR[s]}, s{sT0}, {s}\n  s_and_b32 s{sR[s]}, s{sR[s]}, 3")
    e("  v_lshrrev_b32 v2, 4, v0\n  v_and_b32 v3, 15, v0\n  v_lshrrev_b32 v4, 2, v3\n  v_and_b32 v5, 3, v0")
    e(f"  v_lshlrev_b32 v{vLin}, 4, v0")
    e(f"  v_lshlrev_b32 v6, 10, v3\n  v_lshl_add_u32 v6, v2, 4, v6\n  s_lshl_b32 s{sT0}, s{sW}, 8\n  v_add_u32 v{vXO}, s{sT0}, v6")
    for var in range(2):
        e(f"  v_add_u32 v6, {4*var}, v2\n  v_lshlrev_b32 v6, 1, v6\n  v_xor_b32 v6, v6, v3\n  v_lshlrev_b32 v6, 4, v6\n  v_lshl_add_u32 v{vDW[var]}, v2, 13, v6")
    e("  s_waitcnt lgkmcnt(0)")
    if cfg.stagger: e(f"  s_cmp_lt_u32 s{sB}, 4\n  s_cselect_b32 s{sP}, 1, 0")
    else: e(f"  s_mov_b32 s{sP}, 0")
    e(f"  s_mov_b32 s{sPH}, 0")

    def mksrd(R, lo_expr_regs, off_lo, off_hi, size):
        lo, hi = lo_expr_regs
        e(f"  s_add_u32 s{R}, s{lo}, {off_lo}\n  s_addc_u32 s{R+1}, s{hi}, {off_hi}\n  s_and_b32 s{R+1}, s{R+1}, 0xffff\n  s_mov_b32 s{R+2}, {size}\n  s_mov_b32 s{R+3}, 0x20000")
    def srd_xw():
        e(f"  s_cmp_eq_u32 s{sP}, 0")
        e(f"  s_cselect_b32 s{SRD_X}, s8, s18\n  s_cselect_b32 s{SRD_X+1}, s9, s19")
        e(f"  s_cselect_b32 s{SRD_WQ}, s14, s24\n  s_cselect_b32 s{SRD_WQ+1}, s15, s25")
        e(f"  s_mul_i32 s{sT0}, s{sB}, 81920"); mksrd(SRD_X, (SRD_X, SRD_X+1), f"s{sT0}", 0, 81920)
        e(f"  s_lshl_b32 s{sT0}, s{sH}, 8"); mksrd(SRD_WQ, (SRD_WQ, SRD_WQ+1), f"s{sT0}", 0, 511*8192+256)
    def srd_kvo():
        e(f"  s_cmp_eq_u32 s{sP}, 0")
        e(f"  s_cselect_b32 s{SRD_K}, s10, s20\n  s_cselect_b32 s{SRD_K+1}, s11, s21")
        e(f"  s_cselect_b32 s{SRD_V}, s12, s22\n  s_cselect_b32 s{SRD_V+1}, s13, s23")
        e(f"  s_lshl_b32 s{sT0}, s{sB}, 3\n  s_add_u32 s{sT0}, s{sT0}, s{sXCD}\n  s_lshl_b32 s{sT1}, s{sB}, 5\n  s_add_u32 s{sT1}, s{sT1}, s{sH}")
        e(f"  s_cmp_eq_u32 s{sP}, 0\n  s_cselect_b32 s{sT0}, s{sT0}, s{sT1}")
        e(f"  s_lshr_b32 s{sT1}, s{sT0}, 13\n  s_lshl_b32 s{sT0}, s{sT0}, 19")
        for Rr in (SRD_K, SRD_V): mksrd(Rr, (Rr, Rr+1), f"s{sT0}", f"s{sT1}", 524288)
        e(f"  s_lshl_b32 s{sT0}, s{sP}, 3\n  s_add_u32 s{sT0}, s{sT0}, s{sB}\n  s_lshl_b32 s{sT0}, s{sT0}, 5\n  s_add_u32 s{sT0}, s{sT0}, s{sH}\n  s_mul_i32 s{sT0}, s{sT0}, 20480")
        mksrd(SRD_O, (32, 33), f"s{sT0}", 0, 20480)
    def srd_unit(preg):
        e(f"  s_lshl_b32 s{sT1}, s{sXCD}, 2\n  s_add_u32 s{sT1}, s{sT1}, s{sW}")
        e(f"  s_lshl_b32 s{sT0}, s{preg}, 3\n  s_add_u32 s{sT0}, s{sT0}, s{sB}\n  s_lshl_b32 s{sT0}, s{sT0}, 5\n  s_add_u32 s{sT0}, s{sT0}, s{sT1}\n  s_mul_i32 s{sT0}, s{sT0}, 20480")
        mksrd(SRD_X, (32, 33), f"s{sT0}", 0, 20480)
        e(f"  s_cmp_eq_u32 s{preg}, 0\n  s_cselect_b32 s{SRD_WQ}, s16, s26\n  s_cselect_b32 s{SRD_WQ+1}, s17, s27")
        e(f"  s_lshl_b32 s{sT0}, s{sT1}, 17\n  s_lshl_b32 s{sT1}, s{sJ}, 8\n  s_add_u32 s{sT0}, s{sT0}, s{sT1}")
        mksrd(SRD_WQ, (SRD_WQ, SRD_WQ+1), f"s{sT0}", 0, 127*1024+256)
    def srd_part(R, preg):
        e(f"  s_lshl_b32 s{sT0}, s{preg}, 3\n  s_add_u32 s{sT0}, s{sT0}, s{sB}\n  s_lshl_b32 s{sT0}, s{sT0}, 2\n  s_add_u32 s{sT0}, s{sT0}, s{sJ}\n  s_lshl_b32 s{sT0}, s{sT0}, 3\n  s_add_u32 s{sT0}, s{sT0}, s{sXCD}\n  s_mul_i32 s{sT0}, s{sT0}, 20480\n  s_add_u32 s{sT0}, s{sT0}, {PWS}")
        mksrd(R, (32, 33), f"s{sT0}", 0, 20480)
    def xloads():
        out = []
        for n in range(5):
            for s in range(4):
                out.append(f"  s_lshl_b32 s{sT2}, s{sR[s]}, 6")
                if n: out.append(f"  s_add_u32 s{sT2}, s{sT2}, {n*16384}")
                out.append(f"  buffer_load_dwordx4 {X(n,s)}, v{vXO}, {sr(SRD_X)}, s{sT2} offen")
        return out
    def oloads():
        out = []
        for s in range(4):
            out.append(f"  s_mul_i32 s{sT2}, s{sR[s]}, 5120")
            for n in range(4): out.append(f"  buffer_load_dwordx4 {X(n,s)}, v{vLin}, {sr(SRD_X)}, s{sT2} offen offset:{n*1024}{sc1}")
            out.append(f"  s_add_u32 s{sT2}, s{sT2}, 4096")
            out.append(f"  buffer_load_dwordx4 {X(4,s)}, v{vLin}, {sr(SRD_X)}, s{sT2} offen{sc1}")
        return out
    def wdma(s, slot):
        out = [f"  s_lshl_b32 s{sT4}, s{sW}, 20", f"  s_lshl_b32 s{sT3}, s{sR[s]}, 18", f"  s_add_u32 s{sT4}, s{sT4}, s{sT3}"]
        for pp in range(8):
            out.append(f"  s_add_u32 m0, s{sREG}, {slot*8192 + pp*1024}")
            out.append(f"  s_add_u32 s{sT3}, s{sT4}, {pp*32768}")
            out.append(f"  buffer_load_dwordx4 v{vDW[(pp>>1)&1]}, {sr(SRD_WQ)}, s{sT3} offen lds ; wr=R{slot}")
        return out
    def odma(s, slot):
        out = [f"  s_lshl_b32 s{sT4}, s{sR[s]}, 15"]
        for pp in range(8):
            out.append(f"  s_add_u32 m0, s{sREG}, {slot*8192 + pp*1024}")
            out.append(f"  s_add_u32 s{sT3}, s{sT4}, {pp*4096}")
            out.append(f"  buffer_load_dwordx4 v{vDO[pp&1]}, {sr(SRD_WQ)}, s{sT3} offen lds ; wr=R{slot}")
        return out
    def dma(kind, slot):
        out = []
        srd = SRD_K if kind == "K" else SRD_V
        so = sKT if kind == "K" else sVT
        t = sT0 if kind == "K" else sT1
        for half in range(2):
            out.append(f"  s_add_u32 m0, s{sREG}, {slot*8192 + half*4096}")
            out.append(f"  s_add_u32 s{t}, s{so}, {half*4096}")
            for pp in range(4):
                v = vDK[pp] if kind == "K" else vDV[pp & 1]
                out.append(f"  buffer_load_dwordx4 v{v}, {sr(srd)}, s{t} offen offset:{pp*1024}{nt} lds ; wr=R{slot}")
        out.append(f"  s_add_u32 s{so}, s{so}, 32768")
        return out
    def emit(lst):
        for x in lst: e(x)
    e(f"  s_lshl_b32 s{sT0}, s{sWG}, 7\n  s_add_u32 s{sT0}, s{sT0}, {FLG}")
    mksrd(SRD_O, (32, 33), f"s{sT0}", 0, 128)
    e(f"  v_mov_b32 v6, 0\n  v_lshlrev_b32 v7, 2, v0\n  s_cmp_eq_u32 s{sW}, 0\n  s_cbranch_scc0 L_nozero")
    e(f"  buffer_store_dword v6, v7, {sr(SRD_O)}, 0 offen{sc1}")
    p.label("L_nozero")
    srd_xw()
    emit(xloads())
    for s in range(4): emit(wdma(s, s))
    srd_kvo()
    mksrd(SRD_F, (30, 31), 0, 0, 256)
    e(f"  v_mov_b32 v{vPA}, 0\n  s_mov_b32 s{sEXP}, 256")
    e(f"  v_xor_b32 v6, v2, v3\n  v_lshlrev_b32 v6, 4, v6\n  v_lshl_add_u32 v6, v3, 8, v6\n  v_add_u32 v6, s{sREG}, v6")
    for ks in range(4): e(f"  v_xor_b32 v{vKA[ks]}, {ks << 6}, v6")
    e("  v_lshl_add_u32 v6, v2, 2, v4")
    e("  v_and_b32 v7, 7, v6\n  v_lshlrev_b32 v7, 5, v7\n  v_lshl_add_u32 v7, v5, 3, v7\n  v_lshl_add_u32 v7, v6, 8, v7")
    for mu in range(8):
        e(f"  s_lshl_b32 s{sT0}, s{sW}, 1\n  s_add_u32 s{sT0}, s{sT0}, {mu}\n  s_and_b32 s{sT0}, s{sT0}, 7\n  s_lshl_b32 s{sT0}, s{sT0}, 5")
        e(f"  v_xor_b32 v{vVA[mu]}, s{sT0}, v7\n  v_add_u32 v{vVA[mu]}, s{sREG}, v{vVA[mu]}")
    for pp in range(4):
        e(f"  v_add_u32 v6, {4*pp}, v2\n  v_xor_b32 v6, v6, v3\n  v_lshlrev_b32 v6, 4, v6\n  v_lshl_add_u32 v{vDK[pp]}, v2, 8, v6")
    for pp in range(2):
        e(f"  v_add_u32 v6, {4*pp}, v2\n  v_lshlrev_b32 v6, 1, v6\n  v_xor_b32 v6, v6, v3\n  v_lshlrev_b32 v6, 4, v6")
        e(f"  v_lshl_add_u32 v{vDV[pp]}, v2, 8, v6\n  v_lshl_add_u32 v{vDO[pp]}, v2, 10, v6")
    e("  v_and_b32 v6, 1, v2\n  v_lshl_add_u32 v6, v6, 2, v4\n  v_lshlrev_b32 v6, 1, v6\n  v_xor_b32 v6, v6, v5\n  v_lshlrev_b32 v6, 4, v6")
    e("  v_lshl_add_u32 v7, v2, 3, v4\n  v_lshl_add_u32 v6, v7, 8, v6")
    for q in range(4):
        e(f"  s_add_u32 s{sT0}, s{sW}, {q}\n  s_and_b32 s{sT0}, s{sT0}, 3\n  s_lshl_b32 s{sT0}, s{sT0}, 6")
        e(f"  v_xor_b32 v{vWA[q]}, s{sT0}, v6\n  v_add_u32 v{vWA[q]}, s{sREG}, v{vWA[q]}")
    e("  v_mov_b32 v6, 0x3f803f80")
    for i in range(4): e(f"  v_accvgpr_write_b32 a{aOnes+i}, v6")

    def stamp(i):
        if not cfg.stamps: return
        u = lab("L_st")
        e(f"  s_cmp_eq_u32 s{sPH}, 0\n  s_cbranch_scc0 {u}_b")
        e(f"  s_memrealtime s[{76+2*i}:{77+2*i}]\n  s_branch {u}_e")
        p.label(f"{u}_b")
        p.notrace(lambda: e(f"  s_memrealtime s[{84+2*i}:{85+2*i}]"))
        p.label(f"{u}_e")
        e("  s_waitcnt lgkmcnt(0)")
    tst = [0]
    def tstamp():
        pass
    def call_rs():
        e(f"  s_call_b64 s[{sRET}:{sRET+1}], L1_rs")
        save = p.emit_text; p.emit_text = False
        rs_sub(p, "dummy"); p.emit_text = save
    def fragstore(srd):
        e(f"  s_mul_i32 s{sT0}, s{sW}, 5120")
        for n in range(4):
            e(f"  buffer_store_dwordx4 {vr(P(n))}, v{vLin}, {sr(srd)}, s{sT0} offen offset:{n*1024}{sc1}")
        e(f"  s_add_u32 s{sT0}, s{sT0}, 4096")
        e(f"  buffer_store_dwordx4 {vr(P(4))}, v{vLin}, {sr(srd)}, s{sT0} offen{sc1}")
    def cvt_R():
        for n in range(5):
            for i in range(2):
                b = R(i, n)
                e(f"  v_cvt_pk_bf16_f32 v{P(n)+2*i}, v{b}, v{b+1}\n  v_cvt_pk_bf16_f32 v{P(n)+2*i+1}, v{b+2}, v{b+3}")
    def set_flag(word):
        u = lab("L_fl")
        e(f"  s_cmp_eq_u32 s{sW}, 0\n  s_cbranch_scc0 {u}")
        e(f"  s_lshl_b32 s{sT0}, s{sWG}, 7\n  s_add_u32 s{sT0}, s{sT0}, {FLG + 4*word}")
        e(f"  s_mov_b32 s{sT4}, s32\n  s_and_b32 s{sT5}, s33, 0xffff")
        e(f"  s_mov_b32 s{SRD_F}, s32\n  s_and_b32 s{SRD_F+1}, s33, 0xffff\n  s_mov_b32 s{SRD_F+2}, {FLG + 256*128}\n  s_mov_b32 s{SRD_F+3}, 0x20000")
        e(f"  v_mov_b32 v6, 1\n  v_mov_b32 v7, s{sT0}\n  v_cmp_eq_u32 vcc, 0, v0\n  s_and_saveexec_b64 s[94:95], vcc")
        e(f"  buffer_store_dword v6, v7, {sr(SRD_F)}, 0 offen{sc1}\n  s_mov_b64 exec, s[94:95]")
        p.label(u)
    def poll_setup(word, nlanes):
        e(f"  s_mov_b32 s{SRD_F}, s32\n  s_and_b32 s{SRD_F+1}, s33, 0xffff\n  s_mov_b32 s{SRD_F+2}, {FLG + 256*128}\n  s_mov_b32 s{SRD_F+3}, 0x20000")
        if nlanes == 4:
            e(f"  s_lshl_b32 s{sT0}, s{sB}, 5\n  s_or_b32 s{sT0}, s{sT0}, s{sXCD}\n  s_lshl_b32 s{sT0}, s{sT0}, 7\n  s_add_u32 s{sT0}, s{sT0}, {FLG + 4*word}")
            e(f"  v_and_b32 v{vPA}, 3, v0\n  v_lshlrev_b32 v{vPA}, 10, v{vPA}\n  v_add_u32 v{vPA}, s{sT0}, v{vPA}")
        else:
            e(f"  s_andn2_b32 s{sT0}, s{sWG}, 7\n  s_lshl_b32 s{sT0}, s{sT0}, 7\n  s_add_u32 s{sT0}, s{sT0}, {FLG + 4*word}")
            e(f"  v_and_b32 v{vPA}, 7, v0\n  v_lshlrev_b32 v{vPA}, 7, v{vPA}\n  v_add_u32 v{vPA}, s{sT0}, v{vPA}")
        e(f"  s_mov_b32 s{sEXP}, 1")
    def poll_check(already):
        u = lab("L_pl")
        e(f"  s_mov_b32 s{sT5}, 0")
        if already:
            e(f"  v_cmp_ne_u32 vcc, s{sEXP}, v{vPV}\n  s_nop 1\n  s_cbranch_vccz {u}_ok")
        p.label(f"{u}_sp")
        def spin():
            e(f"  buffer_load_dword v{vPV}, v{vPA}, {sr(SRD_F)}, 0 offen{sc1}\n  s_waitcnt vmcnt(0)")
            e(f"  v_cmp_ne_u32 vcc, s{sEXP}, v{vPV}\n  s_nop 1\n  s_cbranch_vccz {u}_ok")
            e(f"  s_sleep 1\n  s_add_u32 s{sT5}, s{sT5}, 1\n  s_cmp_lt_u32 s{sT5}, {SPIN}\n  s_cbranch_scc1 {u}_sp")
        if already: p.notrace(spin)
        else: spin()
        p.label(f"{u}_ok")
    def kreads(slot):
        return [f"  ds_read_b128 {vr(K(kt,ks))}, v{vKA[ks]} offset:{slot*8192 + kt*4096} ; rd=R{slot}" for kt in range(2) for ks in range(4)]
    def vreads(slot):
        out = []
        for mt in range(8):
            out.append(f"  ds_read_b64_tr_b16 v[{V(mt)}:{V(mt)+1}], v{vVA[mt]} offset:{slot*8192} ; rd=R{slot}")
            out.append(f"  ds_read_b64_tr_b16 v[{V(mt)+2}:{V(mt)+3}], v{vVA[mt]} offset:{slot*8192+4096} ; rd=R{slot}")
        return out
    def wreads(slot):
        out = []
        for m in range(8):
            q, T = m >> 1, m & 1
            out.append(f"  ds_read_b64_tr_b16 v[{V(m)}:{V(m)+1}], v{vWA[q]} offset:{slot*8192 + 8*T} ; rd=R{slot}")
            out.append(f"  ds_read_b64_tr_b16 v[{V(m)+2}:{V(m)+3}], v{vWA[q]} offset:{slot*8192 + 8*T + 1024} ; rd=R{slot}")
        return out
    def gemm(reads, fills, waits):
        for s in range(4):
            e(f"  s_waitcnt vmcnt({waits[s]})")
            emit(reads(s))
            e("  s_waitcnt lgkmcnt(0)")
            mf = []
            for m in range(8):
                for n in range(5):
                    c = "0" if s == 0 else ar(O(m, n))
                    mf.append(f"  {MF} {ar(O(m,n))}, {vr(V(m))}, {X(n,s)}, {c}")
            interleave(p, mf[:16], fills[s])
            emit(mf[16:])
        e("  s_nop 7")
    def qk(n):
        out = []
        for kt in range(2):
            for ks in range(4):
                c = "0" if ks == 0 else vr(S(n, kt))
                out.append(f"  {MF} {vr(S(n,kt))}, {vr(K(kt,ks))}, {ar(Q(n,ks))}, {c}")
        return out
    def sm(n):
        out = []
        for kt in range(2):
            b = S(n, kt)
            for r in range(4): out.append(f"  v_exp_f32 v{b+r}, v{b+r}")
            out.append(f"  v_cvt_pk_bf16_f32 v{P(n)+2*kt}, v{b}, v{b+1}")
            out.append(f"  v_cvt_pk_bf16_f32 v{P(n)+2*kt+1}, v{b+2}, v{b+3}")
        return out
    def pv(n):
        out = [f"  {MF} {ar(O(mt,n))}, {vr(V(mt))}, {vr(P(n))}, {ar(O(mt,n))}" for mt in range(8)]
        out.append(f"  {MF} {vr(L(n))}, {ar(aOnes)}, {vr(P(n))}, {vr(L(n))}")
        return out
    def split(lst, k):
        n = len(lst); return [lst[i*n//k:(i+1)*n//k] for i in range(k)]
    def tile(par, dk=None, dv=None, w1=16, w2=16, last=False, pre=()):
        ks_, vs_ = 2 * par, 2 * par + 1
        kn = 2 * (1 - par)
        if dk is None: dk = dma("K", ks_)
        if dv is None: dv = dma("V", vs_)
        vrd = vreads(vs_); krd = [] if last else kreads(kn)
        e(f"  s_waitcnt vmcnt({w1})")
        emit(pre)
        nq0 = max(0, len(dk) - 10)
        rest = split(dk[nq0:], 4)
        interleave(p, qk(0), vrd[:12] + dk[:nq0])
        interleave(p, qk(1), sm(0) + vrd[12:16] + rest[0])
        interleave(p, qk(2), sm(1) + rest[1])
        interleave(p, qk(3), sm(2) + rest[2])
        interleave(p, qk(4), sm(3) + rest[3])
        e("  s_waitcnt lgkmcnt(0)")
        interleave(p, pv(0), sm(4))
        if not last: e(f"  s_waitcnt vmcnt({w2})")
        dvs = split(dv, 3)
        interleave(p, pv(1), krd + dvs[0])
        interleave(p, pv(2), dvs[1])
        interleave(p, pv(3), dvs[2])
        interleave(p, pv(4), [])
        e("  s_waitcnt lgkmcnt(0)")

    phase_no = [0]
    def phase():
        ph = phase_no[0]; phase_no[0] += 1
        e(f"  s_mov_b32 s{sKT}, s{sW13}\n  s_mov_b32 s{sVT}, s{sW13}")
        gemm(wreads, [dma("K", 0), dma("V", 1), dma("K", 2), []], [24, 24, 24, 24])
        stamp(0)
        u = lab("L_init")
        e(f"  s_or_b32 s{sT0}, s{sPH}, s{sW}\n  s_cmp_eq_u32 s{sT0}, 0\n  s_cbranch_scc0 {u}")
        def init():
            e(f"  v_mov_b32 v6, 1\n  v_mov_b32 v7, 0\n  v_cmp_eq_u32 vcc, 0, v0\n  s_and_saveexec_b64 s[94:95], vcc")
            e(f"  buffer_atomic_add v6, v7, {sr(SRD_F)}, 0 offen sc1\n  s_mov_b64 exec, s[94:95]")
        p.notrace(init)
        p.label(u)
        call_rs()
        e(f"  s_mov_b32 s{sT0}, 0x3e0293ee")
        for i in range(2):
            for n in range(5):
                for r in range(4): e(f"  v_mul_f32 v{R(i,n)+r}, s{sT0}, v{R(i,n)+r}")
        cvt_R()
        e("  s_barrier")
        e(f"  s_add_u32 s{sT0}, s{sREG}, {XTRA}\n  v_add_u32 v6, s{sT0}, v{vLin}")
        for n in range(5): e(f"  ds_write_b128 v6, {vr(P(n))} offset:{n*1024}")
        emit(dma("V", 3))
        e("  s_waitcnt lgkmcnt(0)\n  s_barrier")
        for ks in range(4):
            e(f"  v_add_u32 v6, {ks*REGION + XTRA}, v{vLin}")
            for n in range(5): e(f"  ds_read_b128 {ar(Q(n,ks))}, v6 offset:{n*1024}")
        for i in range(4): e(f"  v_mov_b32 v{P(0)+i}, 0")
        for i in range(20): e(f"  v_mov_b32 v{L(0)+i}, 0")
        e("  s_nop 0")
        for t in range(40): e(f"  {MF} {ar(4*t)}, {vr(P(0))}, {vr(P(0))}, 0")
        u = lab("L_nx")
        e(f"  s_cmp_eq_u32 s{sPH}, 0\n  s_cbranch_scc0 {u}_b")
        def nx0():
            e(f"  s_xor_b32 s{sP}, s{sP}, 1"); srd_xw(); e(f"  s_xor_b32 s{sP}, s{sP}, 1")
        def nx1():
            e(f"  s_xor_b32 s{sT5}, s{sP}, 1"); srd_unit(sT5); poll_setup(0, 4)
        if ph == 0: nx0()
        else: p.notrace(nx0)
        e(f"  s_branch {u}_e")
        p.label(f"{u}_b")
        if ph == 1: nx1()
        else: p.notrace(nx1)
        p.label(f"{u}_e")
        e(f"  s_waitcnt vmcnt(24) lgkmcnt(0)")
        emit(kreads(0))
        e("  s_waitcnt lgkmcnt(0)")
        stamp(1)
        e(f"  s_mov_b32 s{sCNT}, 0")
        pollop = [f"  buffer_load_dword v{vPV}, v{vPA}, {sr(SRD_F)}, 0 offen{sc1}"]
        def body():
            tile(0, w1=16, w2=17, pre=pollop); tile(1, w1=17, w2=16)
        lp = lab("L1_loop") if not p.emit_text else "L1_loop"
        def tail(): e(f"  s_add_u32 s{sCNT}, s{sCNT}, 1\n  s_cmp_lt_u32 s{sCNT}, 7\n  s_cbranch_scc1 L1_loop")
        p.loop(body, tail, "L1_loop")
        poll_check(True)
        u = lab("L_peel")
        e(f"  s_cmp_eq_u32 s{sPH}, 0\n  s_cbranch_scc0 {u}_b")
        def peel0():
            tile(0, dk=xloads() + wdma(0, 0), dv=wdma(1, 1), w1=16, w2=36)
            tile(1, dk=wdma(2, 2), dv=[], w1=36, last=True)
        def peel1():
            tile(0, dk=oloads() + odma(0, 0), dv=odma(1, 1), w1=16, w2=36)
            tile(1, dk=odma(2, 2), dv=[], w1=36, last=True)
        if ph == 0: peel0()
        else: p.notrace(peel0)
        e(f"  s_branch {u}_e")
        p.label(f"{u}_b")
        if ph == 1: peel1()
        else: p.notrace(peel1)
        p.label(f"{u}_e")
        stamp(2)
        e("  s_nop 7")
        call_rs()
        for n in range(5): e(f"  v_rcp_f32 v{1+n}, v{1+n}")
        e("  s_nop 0")
        for n in range(5):
            for i in range(2):
                for r in range(4): e(f"  v_mul_f32 v{R(i,n)+r}, v{1+n}, v{R(i,n)+r}")
        cvt_R()
        fragstore(SRD_O)
        e("  s_barrier")
        u = lab("L_w3")
        e(f"  s_cmp_eq_u32 s{sPH}, 0\n  s_cbranch_scc0 {u}_b")
        if ph == 0: emit(wdma(3, 3))
        else: p.notrace(lambda: emit(wdma(3, 3)))
        e(f"  s_branch {u}_e")
        p.label(f"{u}_b")
        if ph == 1: emit(odma(3, 3))
        else: p.notrace(lambda: emit(odma(3, 3)))
        p.label(f"{u}_e")
        e("  s_waitcnt vmcnt(8)\n  s_barrier")
        u = lab("L_fl")
        e(f"  s_cmp_eq_u32 s{sW}, 0\n  s_cbranch_scc0 {u}")
        def fl():
            e(f"  s_lshl_b32 s{sT0}, s{sWG}, 7\n  s_lshl_b32 s{sT1}, s{sPH}, 2\n  s_add_u32 s{sT0}, s{sT0}, s{sT1}\n  s_add_u32 s{sT0}, s{sT0}, {FLG}")
            e(f"  s_mov_b32 s{SRD_F}, s32\n  s_and_b32 s{SRD_F+1}, s33, 0xffff\n  s_mov_b32 s{SRD_F+2}, {FLG + 256*128}\n  s_mov_b32 s{SRD_F+3}, 0x20000")
            e(f"  v_mov_b32 v6, 1\n  v_mov_b32 v7, s{sT0}\n  v_cmp_eq_u32 vcc, 0, v0\n  s_and_saveexec_b64 s[94:95], vcc")
            e(f"  buffer_store_dword v6, v7, {sr(SRD_F)}, 0 offen{sc1}\n  s_mov_b64 exec, s[94:95]")
        p.notrace(fl)
        p.label(u)
        e(f"  s_xor_b32 s{sP}, s{sP}, 1")
        srd_kvo()
        stamp(3)
    def ptail():
        e(f"  s_add_u32 s{sPH}, s{sPH}, 1\n  s_cmp_lt_u32 s{sPH}, 2\n  s_cbranch_scc1 L1_phase")
    p.loop(phase, ptail, "L1_phase", trace_iters=2)
    if cfg.stamps:
        e("  s_memrealtime s[92:93]\n  s_waitcnt lgkmcnt(0)")
        e(f"  s_lshl_b32 s{sT0}, s2, 10\n  s_lshl_b32 s{sT1}, s{sW}, 8\n  s_add_u32 s{sT0}, s{sT0}, s{sT1}\n  s_add_u32 s{sT0}, s{sT0}, {64<<20}\n  s_mov_b32 s101, s{sT0}")
    srd_part(SRD_K, sP)
    e(f"  s_xor_b32 s{sT5}, s{sP}, 1")
    srd_part(SRD_V, sT5)
    srd_unit(sT5)
    gemm(vreads, [odma(0, 0), odma(1, 1), odma(2, 2), []], [63, 63, 63, 24])
    if cfg.stamps: e("  s_memrealtime s[76:77]\n  s_waitcnt lgkmcnt(0)")
    poll_setup(1, 4)
    poll_check(False)
    emit(oloads())
    if cfg.stamps: e("  s_memrealtime s[78:79]\n  s_waitcnt lgkmcnt(0)")
    call_rs()
    cvt_R()
    fragstore(SRD_K)
    e("  s_barrier")
    emit(odma(3, 3))
    if cfg.stamps: e("  s_memrealtime s[80:81]\n  s_waitcnt lgkmcnt(0)")
    gemm(vreads, [[], [], [], []], [13, 63, 63, 0])
    if cfg.stamps: e("  s_memrealtime s[82:83]\n  s_waitcnt lgkmcnt(0)")
    call_rs()
    cvt_R()
    fragstore(SRD_V)
    e("  s_waitcnt vmcnt(0)\n  s_barrier")
    set_flag(2)
    if cfg.stamps: e("  s_memrealtime s[84:85]\n  s_waitcnt lgkmcnt(0)")
    poll_setup(2, 8)
    poll_check(False)
    if cfg.stamps: e("  s_memrealtime s[86:87]\n  s_waitcnt lgkmcnt(0)")
    def item(iexpr):
        e(f"  s_mul_i32 s{sT4}, s{sXCD}, 5\n  s_add_u32 s{sT4}, s{sT4}, {iexpr}")
        e(f"  s_cmp_ge_u32 s{sT4}, 20\n  s_cselect_b32 s{sT5}, 1, 0\n  s_mul_i32 s{sT0}, s{sT5}, 20\n  s_sub_u32 s{sT4}, s{sT4}, s{sT0}")
        e(f"  s_lshl_b32 s{sT0}, s{sT5}, 3\n  s_add_u32 s{sT0}, s{sT0}, s{sB}\n  s_lshl_b32 s{sT0}, s{sT0}, 2\n  s_add_u32 s{sT0}, s{sT0}, s{sJ}\n  s_mul_i32 s{sT0}, s{sT0}, {8*20480}\n  s_add_u32 s{sT0}, s{sT0}, {PWS}")
        mksrd(SRD_X, (32, 33), f"s{sT0}", 0, 8*20480)
        e(f"  s_lshl_b32 s{sT1}, s{sT4}, 10")
        for x in range(8):
            e(f"  buffer_load_dwordx4 v[{40+4*x}:{43+4*x}], v{vLin}, {sr(SRD_X)}, s{sT1} offen{sc1}\n  s_add_u32 s{sT1}, s{sT1}, 20480")
        e(f"  s_mul_i32 s{sT2}, s{sT4}, 13\n  s_lshr_b32 s{sT2}, s{sT2}, 6")
        e(f"  s_mul_i32 s{sT3}, s{sT2}, 5\n  s_sub_u32 s{sT3}, s{sT4}, s{sT3}")
        e(f"  s_mul_i32 s{sT0}, s{sB}, 163840\n  s_lshl_b32 s{sT1}, s{sT5}, 10\n  s_add_u32 s{sT0}, s{sT0}, s{sT1}\n  s_lshl_b32 s{sT1}, s{sJ}, 8\n  s_add_u32 s{sT0}, s{sT0}, s{sT1}\n  s_lshl_b32 s{sT1}, s{sT2}, 6\n  s_add_u32 s{sT0}, s{sT0}, s{sT1}")
        mksrd(SRD_WQ, (28, 29), f"s{sT0}", 0, 79*2048+64)
        e(f"  s_lshl_b32 s{sT3}, s{sT3}, 15")
        for i in range(8): e(f"  v_mov_b32 v{80+i}, 0")
        for x in range(8):
            e(f"  s_waitcnt vmcnt({7-x})")
            for r in range(4):
                e(f"  v_lshlrev_b32 v72, 16, v{40+4*x+r}\n  v_and_b32 v73, 0xffff0000, v{40+4*x+r}\n  v_add_f32 v{80+2*r}, v{80+2*r}, v72\n  v_add_f32 v{81+2*r}, v{81+2*r}, v73")
        for r in range(4): e(f"  v_cvt_pk_bf16_f32 v{90+r}, v{80+2*r}, v{81+2*r}")
        e("  v_and_b32 v58, 15, v0\n  v_lshlrev_b32 v58, 11, v58\n  v_lshrrev_b32 v59, 4, v0\n  v_lshl_add_u32 v58, v59, 3, v58")
        e(f"  buffer_store_dwordx2 v[90:91], v58, {sr(SRD_WQ)}, s{sT3} offen\n  buffer_store_dwordx2 v[92:93], v58, {sr(SRD_WQ)}, s{sT3} offen offset:32")
        e("  s_waitcnt vmcnt(0)")
    item(f"s{sW}")
    e(f"  s_cmp_eq_u32 s{sW}, 0\n  s_cbranch_scc0 L_s2done")
    item("4")
    p.label("L_s2done")
    if cfg.stamps:
        e("  s_memrealtime s[88:89]\n  s_waitcnt vmcnt(0) lgkmcnt(0)")
        e(f"  s_mov_b32 s{SRD_O}, s32\n  s_and_b32 s{SRD_O+1}, s33, 0xffff\n  s_mov_b32 s{SRD_O+2}, {128<<20}\n  s_mov_b32 s{SRD_O+3}, 0x20000")
        e("  v_cmp_eq_u32 vcc, 0, v0\n  s_and_saveexec_b64 s[94:95], vcc\n  v_mov_b32 v8, s101")
        for i, r in enumerate([74, 92, 76, 78, 80, 82, 84, 86, 88]):
            e(f"  v_mov_b32 v4, s{r}\n  v_mov_b32 v5, s{r+1}\n  buffer_store_dwordx2 v[4:5], v8, {sr(SRD_O)}, 0 offen offset:{8*i}\n  s_nop 1")
    e("  s_waitcnt vmcnt(0)")
    p.label("L1_end")
    e("  s_endpgm")
    p.notrace(lambda: rs_sub(p, "L1_rs"))

def descr(kname, vgpr=512, acc=256, sgpr=102):
    return (f'.amdhsa_kernel {kname}\n  .amdhsa_next_free_vgpr {vgpr}\n  .amdhsa_next_free_sgpr {sgpr}\n  .amdhsa_accum_offset {acc}\n'
            "  .amdhsa_group_segment_fixed_size 0\n  .amdhsa_kernarg_size 104\n  .amdhsa_user_sgpr_count 2\n"
            "  .amdhsa_user_sgpr_kernarg_segment_ptr 1\n  .amdhsa_system_sgpr_workgroup_id_x 1\n.end_amdhsa_kernel\n")

def generate(cfg):
    kname = NAME + "_kernel"
    p = Prog(); gen(p, cfg, kname)
    errs = check(p.trace, "k")
    txt = "; @launch grid=(256,1,1) block=(256,1,1) lds=163840\n" + '.amdgcn_target "amdgcn-amd-amdhsa--gfx950"\n.text\n' + p.text() + '.section .rodata,"a"\n.p2align 6\n' + descr(kname)
    return txt, errs

if __name__ == "__main__":
    cfg = Cfg()
    txt, errs = generate(cfg)
    for x in errs[:40]: print(x)
    print(len(errs), "checker errors")
    open("v3.s", "w").write(txt)
```
